```python
import torch

def _softmax(x, axis=-1):
    return torch.softmax(x, dim=axis)
def _gelu(x):
    return torch.nn.functional.gelu(x, approximate="tanh")
def _silu(x):
    return torch.nn.functional.silu(x)
def _sigmoid(x):
    return torch.sigmoid(x)
def _layernorm(x, axis=-1, eps=1e-5):
    m = x.mean(dim=axis, keepdim=True)
    v = x.var(dim=axis, keepdim=True, unbiased=False)
    return (x - m) / torch.sqrt(v + eps)
def _scatter_add(tgt, idx, src, axis=0):
    return tgt.clone().index_add_(axis, idx, src)
def _segment_sum(src, seg, n):
    out = torch.zeros((n,) + src.shape[1:], dtype=src.dtype)
    return out.index_add_(0, seg, src)
def _pad(x, pw):
    flat = tuple(v for pair in reversed(pw) for v in pair)
    return torch.nn.functional.pad(x, flat)

kernel_name = 'interleave_layers__spectral_fnet__glu_gated_glu__prompt'

def setup_inputs():

    _w = (lambda a: (lambda t: t.to(torch.bfloat16) if t.is_floating_point() else t)(torch.as_tensor(a)))
    def _A_setup():
        B, S, D = 1, 2048, 1024
        ns = torch.arange(S)[:, None] * torch.arange(S)[None, :]
        nd = torch.arange(D)[:, None] * torch.arange(D)[None, :]
        Ws_re = torch.cos(-2.0 * torch.pi * ns / S).to(float)
        Ws_im = torch.sin(-2.0 * torch.pi * ns / S).to(float)
        Wd_re = torch.cos(-2.0 * torch.pi * nd / D).to(float)
        Wd_im = torch.sin(-2.0 * torch.pi * nd / D).to(float)
        return {
            "x": _w((lambda *s: torch.randn(*s, dtype=torch.bfloat16) * 0.05)(B, S, D)),
            "dft_seq_re": _w(Ws_re),
            "dft_seq_im": _w(Ws_im),
            "dft_hid_re": _w(Wd_re),
            "dft_hid_im": _w(Wd_im),
        }
    _A_in = _A_setup()

    def _B_setup():
        B, S, D, F = 1, 2048, 1024, 3584
        return {
            "x": _w((lambda *s: torch.randn(*s, dtype=torch.bfloat16) * 0.05)(B, S, D)),
            "w_gate": _w((lambda *s: torch.randn(*s, dtype=torch.bfloat16) * 1.6)(D, F)),
            "w_up": _w((lambda *s: torch.randn(*s, dtype=torch.bfloat16) * 0.8)(D, F)),
            "w_down": _w((lambda *s: torch.randn(*s, dtype=torch.bfloat16) * 0.8)(F, D)),
        }
    _B_in = _B_setup()

    return {
        "A_x": _A_in["x"],
        "A_dft_seq_re": _A_in["dft_seq_re"],
        "A_dft_seq_im": _A_in["dft_seq_im"],
        "A_dft_hid_re": _A_in["dft_hid_re"],
        "A_dft_hid_im": _A_in["dft_hid_im"],
        "B_x": _B_in["x"],
        "B_w_gate": _B_in["w_gate"],
        "B_w_up": _B_in["w_up"],
        "B_w_down": _B_in["w_down"],
    }

def reference(A_x, A_dft_seq_re, A_dft_seq_im, A_dft_hid_re, A_dft_hid_im, B_x, B_w_gate, B_w_up, B_w_down):
    def _A_ref(x, dft_seq_re, dft_seq_im, dft_hid_re, dft_hid_im):
        a = torch.einsum("bsd,ed->bse", x, dft_hid_re)
        b = torch.einsum("bsd,ed->bse", x, dft_hid_im)
        y = torch.einsum("ts,bse->bte", dft_seq_re, a) - torch.einsum("ts,bse->bte", dft_seq_im, b)
        return y

    def _B_ref(x, w_gate, w_up, w_down):
        g = torch.einsum("bsd,df->bsf", x, w_gate)
        u = torch.einsum("bsd,df->bsf", x, w_up)
        h = _sigmoid(g) * u
        return torch.einsum("bsf,fd->bsd", h, w_down)

    x = A_x
    x = x + _A_ref(_layernorm(x, axis=-1), A_dft_seq_re, A_dft_seq_im, A_dft_hid_re, A_dft_hid_im)
    x = x + _B_ref(_layernorm(x, axis=-1), B_w_gate, B_w_up, B_w_down)
    x = x + _A_ref(_layernorm(x, axis=-1), A_dft_seq_re, A_dft_seq_im, A_dft_hid_re, A_dft_hid_im)
    x = x + _B_ref(_layernorm(x, axis=-1), B_w_gate, B_w_up, B_w_down)
    return x
```

```python
class Emit:
    def __init__(self):
        self.lines = []

    def __call__(self, s=""):
        self.lines.append("    " + s if s and not s.endswith(":") else s)

    def label(self, s):
        self.lines.append(s + ":")

    def comment(self, s):
        self.lines.append("    ; " + s)

    def raw(self, s):
        self.lines.append(s)

    def text(self):
        return "\n".join(self.lines) + "\n"


def vr(base, n=1):
    return f"v{base}" if n == 1 else f"v[{base}:{base + n - 1}]"


def ar(base, n=1):
    return f"a{base}" if n == 1 else f"a[{base}:{base + n - 1}]"


def sr(base, n=1):
    return f"s{base}" if n == 1 else f"s[{base}:{base + n - 1}]"


class VAlloc:
    def __init__(self, start=0):
        self.next = start
        self.hi = start

    def alloc(self, n=1, align=1):
        self.next = (self.next + align - 1) // align * align
        b = self.next
        self.next += n
        self.hi = max(self.hi, self.next)
        return b

    def mark(self):
        return self.next

    def release_to(self, m):
        self.next = m


def kernel_header(E, name):
    E.raw(".text")
    E.raw(f".globl {name}")
    E.raw(".p2align 8")
    E.raw(f".type {name},@function")
    E.raw(f"{name}:")


def kernel_footer(E, name, nvgpr, nsgpr, accum_offset):
    E("s_endpgm")
    E.raw('.section .rodata,"a"')
    E.raw(".p2align 6")
    E.raw(f".amdhsa_kernel {name}")
    E.raw(f"  .amdhsa_next_free_vgpr {nvgpr}")
    E.raw(f"  .amdhsa_next_free_sgpr {nsgpr}")
    E.raw(f"  .amdhsa_accum_offset {accum_offset}")
    E.raw("  .amdhsa_group_segment_fixed_size 0")
    E.raw("  .amdhsa_kernarg_size 96")
    E.raw("  .amdhsa_user_sgpr_count 2")
    E.raw("  .amdhsa_user_sgpr_kernarg_segment_ptr 1")
    E.raw("  .amdhsa_system_sgpr_workgroup_id_x 1")
    E.raw("  .amdhsa_float_denorm_mode_32 3")
    E.raw("  .amdhsa_float_denorm_mode_16_64 3")
    E.raw(".end_amdhsa_kernel")
    E.raw("")


def align4(x):
    return (x + 3) // 4 * 4
```

```python
from asmlib import *

MB = 1 << 20
KARG = dict(A_x=0, seq_re=8, seq_im=16, hid_re=24, hid_im=32, B_x=40, w_gate=48, w_up=56,
            w_down=64, out=72, dbg=80, ws=88)
WS = dict(LN=0, ABT=4 * MB, P=12 * MB, X=20 * MB, H=24 * MB, Q=40 * MB, WGU=56 * MB, WD=72 * MB)

BK = 64
ROWB = BK * 2

S_SRD_M, S_SRD_N, S_SRD_C = 8, 12, 16
S_TM, S_TN, S_Z = 20, 21, 22
S_WAVE, S_M0M, S_M0N, S_KOFF, S_CNT = 24, 25, 26, 27, 28
S_T0, S_T1, S_T2, S_T3 = 29, 30, 31, 34
S_P0, S_P1 = 4, 6
S_P2 = 32
S_WSP = 36
S_XP0, S_XP1 = 38, 40


def build_srd(E, srd, ptr, off, size):
    if isinstance(off, int):
        if off == 0:
            E(f"s_mov_b32 s{srd}, s{ptr}")
            E(f"s_mov_b32 s{srd + 1}, s{ptr + 1}")
        else:
            E(f"s_add_u32 s{srd}, s{ptr}, {off}")
            E(f"s_addc_u32 s{srd + 1}, s{ptr + 1}, 0")
        E(f"s_mov_b32 s{srd + 2}, {size - off}")
    else:
        E(f"s_add_u32 s{srd}, s{ptr}, {off}")
        E(f"s_addc_u32 s{srd + 1}, s{ptr + 1}, 0")
        E(f"s_sub_u32 s{srd + 2}, {size}, {off}")
    E(f"s_mov_b32 s{srd + 3}, 0x20000")


def ws_ptr(E, dst, wsoff):
    if wsoff == 0:
        E(f"s_mov_b32 s{dst}, s{S_WSP}")
        E(f"s_mov_b32 s{dst + 1}, s{S_WSP + 1}")
    else:
        E(f"s_add_u32 s{dst}, s{S_WSP}, {wsoff}")
        E(f"s_addc_u32 s{dst + 1}, s{S_WSP + 1}, 0")


def key_of_row(r):
    return (r & 3) | ((r >> 1) & 4)


class GemmCfg:
    def __init__(self, **kw):
        self.__dict__.update(kw)


def gen_gemm(name, cfg):
    c = cfg
    E = Emit()
    nw = c.wm * c.wn
    TM = c.wm * c.bm * 16
    TN = c.wn * c.tn_rows
    assert TM % (8 * nw) == 0 and TN % (8 * nw) == 0, (TM, TN, nw)
    ndM, ndN = TM // 8 // nw, TN // 8 // nw
    nd = ndM + ndN
    stage_bytes = (TM + TN) * ROWB
    lds_bytes = stage_bytes * c.S
    niter = c.K // BK
    assert c.K % BK == 0 and niter % c.S == 0 and niter >= 2 * c.S
    bn = len(c.nblocks)
    nacc = bn * c.bm * 4
    nhi = 2 if lds_bytes > 65536 else 1

    kernel_header(E, name)
    E(f"s_cmp_ge_u32 s2, {c.nwg}")
    E(f"s_cbranch_scc1 {name}_end")
    c.setup(E)
    V = VAlloc(1)
    vLane = V.alloc()
    vWave = V.alloc()
    vT = [V.alloc() for _ in range(6)]
    vDM = [V.alloc() for _ in range(ndM)]
    vDN = [V.alloc() for _ in range(ndN)]
    E(f"v_and_b32 v{vLane}, 63, v0")
    E(f"v_lshrrev_b32 v{vWave}, 6, v0")
    E("s_nop 0")
    E(f"v_readfirstlane_b32 s{S_WAVE}, v{vWave}")
    E(f"v_lshrrev_b32 v{vT[0]}, 3, v{vLane}")
    E(f"v_and_b32 v{vT[1]}, 7, v{vLane}")

    def dma_offsets(vlist, ndx, pitch):
        for t in range(ndx):
            E(f"v_mul_u32_u24 v{vT[2]}, {ndx * 8}, v{vWave}")
            E(f"v_add_u32 v{vT[2]}, v{vT[2]}, v{vT[0]}")
            if t:
                E(f"v_add_u32 v{vT[2]}, {t * 8}, v{vT[2]}")
            E(f"v_and_b32 v{vT[3]}, 3, v{vT[2]}")
            E(f"v_lshrrev_b32 v{vT[4]}, 1, v{vT[2]}")
            E(f"v_and_or_b32 v{vT[3]}, v{vT[4]}, 4, v{vT[3]}")
            E(f"v_xor_b32 v{vT[3]}, v{vT[3]}, v{vT[1]}")
            E(f"v_lshlrev_b32 v{vT[3]}, 4, v{vT[3]}")
            E(f"v_mul_u32_u24 v{vlist[t]}, {pitch}, v{vT[2]}")
            E(f"v_add_u32 v{vlist[t]}, v{vlist[t]}, v{vT[3]}")

    dma_offsets(vDM, ndM, c.pitchM)
    dma_offsets(vDN, ndN, c.pitchN)
    E(f"s_mul_i32 s{S_M0M}, s{S_WAVE}, {ndM * 1024}")
    E(f"s_mul_i32 s{S_M0N}, s{S_WAVE}, {ndN * 1024}")
    E(f"s_add_u32 s{S_M0N}, s{S_M0N}, {TM * ROWB}")
    E(f"s_mov_b32 s{S_KOFF}, 0")

    dma_count = [0]

    def dma_instrs(stage):
        out = []
        for t in range(ndM):
            out.append((f"s_add_u32 m0, s{S_M0M}, {stage * stage_bytes + t * 1024}",
                        f"buffer_load_dwordx4 v{vDM[t]}, s[{S_SRD_M}:{S_SRD_M + 3}], s{S_KOFF} offen lds"))
        for t in range(ndN):
            out.append((f"s_add_u32 m0, s{S_M0N}, {stage * stage_bytes + t * 1024}",
                        f"buffer_load_dwordx4 v{vDN[t]}, s[{S_SRD_N}:{S_SRD_N + 3}], s{S_KOFF} offen lds"))
        return out

    def emit_dma_stage(stage):
        for m0i, ld in dma_instrs(stage):
            E(m0i)
            E("s_nop 0")
            E(ld)
        E(f"s_add_u32 s{S_KOFF}, s{S_KOFF}, {ROWB}")

    for st in range(c.S):
        emit_dma_stage(st)

    vY = [[V.alloc() for _ in range(2)] for _ in range(nhi)]
    kinds = sorted(set(b[0] for b in c.nblocks))
    vX = {k: [[V.alloc() for _ in range(2)] for _ in range(nhi)] for k in kinds}
    vI, vG = vT[0], vT[1]
    E(f"v_and_b32 v{vI}, 15, v{vLane}")
    E(f"v_lshrrev_b32 v{vG}, 4, v{vLane}")
    E(f"v_and_b32 v{vT[2]}, {c.wm - 1}, v{vWave}")
    lg = c.wm.bit_length() - 1
    E(f"v_lshrrev_b32 v{vT[3]}, {lg}, v{vWave}")

    def frag_addr(dst_list, rowl_reg, wave_reg, rows_per_wave, region_off):
        E(f"v_and_b32 v{vT[4]}, 3, v{rowl_reg}")
        E(f"v_lshrrev_b32 v{vT[5]}, 1, v{rowl_reg}")
        E(f"v_and_or_b32 v{vT[4]}, v{vT[5]}, 4, v{vT[4]}")
        E(f"v_xor_b32 v{vT[4]}, v{vT[4]}, v{vG}")
        E(f"v_lshlrev_b32 v{vT[4]}, 4, v{vT[4]}")
        E(f"v_mul_u32_u24 v{vT[5]}, {rows_per_wave}, v{wave_reg}")
        E(f"v_add_u32 v{vT[5]}, v{vT[5]}, v{rowl_reg}")
        E(f"v_lshlrev_b32 v{vT[5]}, 7, v{vT[5]}")
        E(f"v_add_u32 v{dst_list[0][0]}, v{vT[5]}, v{vT[4]}")
        if region_off:
            E(f"v_add_u32 v{dst_list[0][0]}, {region_off}, v{dst_list[0][0]}")
        E(f"v_xor_b32 v{dst_list[0][1]}, 64, v{dst_list[0][0]}")
        if nhi == 2:
            E(f"v_add_u32 v{dst_list[1][0]}, 0x10000, v{dst_list[0][0]}")
            E(f"v_add_u32 v{dst_list[1][1]}, 0x10000, v{dst_list[0][1]}")

    frag_addr(vY, vI, vT[2], c.bm * 16, 0)
    vRowP = V.alloc()
    for k in kinds:
        if k == 'plain':
            frag_addr(vX[k], vI, vT[3], c.tn_rows, TM * ROWB)
        else:
            E(f"v_lshrrev_b32 v{vRowP}, 2, v{vI}")
            E(f"v_lshlrev_b32 v{vRowP}, 3, v{vRowP}")
            E(f"v_and_or_b32 v{vRowP}, v{vI}, 3, v{vRowP}")
            frag_addr(vX[k], vRowP, vT[3], c.tn_rows, TM * ROWB)

    esz = 4 if c.epi == 'f32' else 2
    vStP = V.alloc()
    vStQ = V.alloc()
    ncol_wave = c.ncol_wave if hasattr(c, 'ncol_wave') else c.tn_rows
    E(f"v_mul_u32_u24 v{vT[4]}, {c.bm * 16}, v{vT[2]}")
    E(f"v_add_u32 v{vT[4]}, v{vT[4]}, v{vI}")
    E(f"v_mul_u32_u24 v{vT[4]}, {c.ldc}, v{vT[4]}")
    E(f"v_mul_u32_u24 v{vT[5]}, {ncol_wave * esz}, v{vT[3]}")
    E(f"v_add_u32 v{vT[4]}, v{vT[4]}, v{vT[5]}")
    E(f"v_lshl_add_u32 v{vStP}, v{vG}, 4, v{vT[4]}")
    E(f"v_lshl_add_u32 v{vStQ}, v{vG}, 3, v{vT[4]}")

    FY = [[V.alloc(4, 4) for _ in range(c.bm)] for _ in range(2)]
    FX = [[V.alloc(4, 4) for _ in range(bn)] for _ in range(2)]
    accum_offset = align4(V.hi)

    def acc(nb, mb):
        return (nb * c.bm + mb) * 4

    for i in range(nacc):
        E(f"v_accvgpr_write_b32 a{i}, 0")

    def reads(stage, kk):
        out = []
        base = stage * stage_bytes
        xs, ys = [], []
        for mb in range(c.bm):
            off = base + mb * 16 * ROWB
            hi, off = off >> 16, off & 0xffff
            ys.append(f"ds_read_b128 v[{FY[kk][mb]}:{FY[kk][mb] + 3}], v{vY[hi][kk]} offset:{off}")
        for nb, blk in enumerate(c.nblocks):
            if blk[0] == 'pair':
                off = base + (blk[1] + 4 * blk[2]) * ROWB
            else:
                off = base + blk[1] * ROWB
            hi, off = off >> 16, off & 0xffff
            xs.append(f"ds_read_b128 v[{FX[kk][nb]}:{FX[kk][nb] + 3}], v{vX[blk[0]][hi][kk]} offset:{off}")
        while xs or ys:
            if xs:
                out.append(xs.pop(0))
            if ys:
                out.append(ys.pop(0))
        return out

    def mfmas(kk):
        out = []
        for nb in range(bn):
            for mb in range(c.bm):
                a = acc(nb, mb)
                out.append(f"v_mfma_f32_16x16x32_bf16 a[{a}:{a + 3}], v[{FX[kk][nb]}:{FX[kk][nb] + 3}], "
                           f"v[{FY[kk][mb]}:{FY[kk][mb] + 3}], a[{a}:{a + 3}]")
        return out

    def interleave(ms, sides, per_gap):
        sides = list(sides)
        for i, m in enumerate(ms):
            E(m)
            for _ in range(per_gap):
                if sides:
                    E(sides.pop(0))
        for s in sides:
            E(s)

    E(f"s_waitcnt vmcnt({nd * (c.S - 1)})")
    E("s_barrier")
    for r in reads(0, 0):
        E(r)

    def iteration(stage, do_dma, vm_wait, has_next):
        nxt = (stage + 1) % c.S
        E("s_waitcnt lgkmcnt(0)")
        pg0 = max(1, -(-len(reads(stage, 1)) // max(1, len(mfmas(0)) // 2)))
        interleave(mfmas(0), reads(stage, 1), pg0)
        E("s_waitcnt lgkmcnt(0)")
        if has_next:
            E(f"s_waitcnt vmcnt({vm_wait})")
            E("s_barrier")
        sides = []
        rd = reads(nxt, 0) if has_next else []
        dm = dma_instrs(stage) if do_dma else []
        while rd or dm:
            if dm:
                m0i, ld = dm.pop(0)
                sides.append(m0i)
                sides.append(rd.pop(0) if rd else "s_nop 0")
                sides.append(ld)
            elif rd:
                sides.append(rd.pop(0))
        if do_dma:
            sides.append(f"s_add_u32 s{S_KOFF}, s{S_KOFF}, {ROWB}")
        pg1 = max(1, -(-len(sides) // max(1, (len(mfmas(1)) * 3) // 4)))
        interleave(mfmas(1), sides, pg1)

    trips = (niter - c.S) // c.S
    E(f"s_mov_b32 s{S_CNT}, {trips}")
    E.label(f"{name}_loop")
    for st in range(c.S):
        iteration(st, True, nd * (c.S - 2), True)
    E(f"s_sub_u32 s{S_CNT}, s{S_CNT}, 1")
    E(f"s_cmp_lg_u32 s{S_CNT}, 0")
    E(f"s_cbranch_scc1 {name}_loop")
    for j in range(c.S):
        it = niter - c.S + j
        st = it % c.S
        has_next = it < niter - 1
        iteration(st, False, nd * max(0, niter - it - 2), has_next)

    E("s_nop 15")
    E("s_nop 7")
    srdC = f"s[{S_SRD_C}:{S_SRD_C + 3}]"
    tmp = FY[0][0]
    ntmp = (FX[1][bn - 1] + 4) - FY[0][0]
    assert ntmp >= 64 or c.epi != 'glu'
    rot = [0]

    def soff(val):
        E(f"s_mov_b32 s{S_T0}, {val}")
        return f"s{S_T0}"

    if c.epi in ('bf16', 'f32'):
        sets = 4
        setsz = 8 if c.epi == 'bf16' else 4
        k = 0
        for mb in range(c.bm):
            nb = 0
            while nb < bn:
                blk = c.nblocks[nb]
                base = tmp + (k % sets) * 16
                k += 1
                if c.epi == 'f32':
                    assert blk[0] == 'plain'
                    a = acc(nb, mb)
                    for r in range(4):
                        E(f"v_accvgpr_read_b32 v{base + r}, a{a + r}")
                    so = soff(mb * 16 * c.ldc + blk[1] * 4)
                    E(f"buffer_store_dwordx4 v[{base}:{base + 3}], v{vStP}, {srdC}, {so} offen")
                    nb += 1
                elif blk[0] == 'pair':
                    assert blk[2] == 0 and c.nblocks[nb + 1][0] == 'pair' and c.nblocks[nb + 1][2] == 1
                    a0, a1 = acc(nb, mb), acc(nb + 1, mb)
                    for r in range(4):
                        E(f"v_accvgpr_read_b32 v{base + r}, a{a0 + r}")
                        E(f"v_accvgpr_read_b32 v{base + 4 + r}, a{a1 + r}")
                    for d in range(4):
                        E(f"v_cvt_pk_bf16_f32 v{base + 8 + d}, v{base + 2 * d}, v{base + 2 * d + 1}")
                    so = soff(mb * 16 * c.ldc + blk[1] * 2)
                    E(f"buffer_store_dwordx4 v[{base + 8}:{base + 11}], v{vStP}, {srdC}, {so} offen")
                    nb += 2
                else:
                    a = acc(nb, mb)
                    for r in range(4):
                        E(f"v_accvgpr_read_b32 v{base + r}, a{a + r}")
                    for d in range(2):
                        E(f"v_cvt_pk_bf16_f32 v{base + 8 + d}, v{base + 2 * d}, v{base + 2 * d + 1}")
                    so = soff(mb * 16 * c.ldc + blk[1] * 2)
                    E(f"buffer_store_dwordx2 v[{base + 8}:{base + 9}], v{vStQ}, {srdC}, {so} offen")
                    nb += 1
    else:
        hb = bn // 2
        E(f"s_mov_b32 s{S_T1}, 0xbfb8aa3b")
        E(f"s_mov_b32 s{S_T2}, 0xffff0000")
        k = 0
        for mb in range(c.bm):
            nb = 0
            while nb < hb:
                blk = c.nblocks[nb]
                npair = 2 if blk[0] == 'pair' else 1
                nel = 4 * npair
                base = tmp + (k % 2) * 40
                k += 1
                g = base
                u = base + 8
                t = base + 16
                p = base + 24
                o = base + 32
                for j in range(npair):
                    ag, au = acc(nb + j, mb), acc(hb + nb + j, mb)
                    for r in range(4):
                        E(f"v_accvgpr_read_b32 v{g + 4 * j + r}, a{ag + r}")
                        E(f"v_accvgpr_read_b32 v{u + 4 * j + r}, a{au + r}")
                for d in range(nel // 2):
                    E(f"v_cvt_pk_bf16_f32 v{p + d}, v{g + 2 * d}, v{g + 2 * d + 1}")
                for d in range(nel // 2):
                    E(f"v_lshlrev_b32 v{g + 2 * d}, 16, v{p + d}")
                    E(f"v_and_b32 v{g + 2 * d + 1}, s{S_T2}, v{p + d}")
                for d in range(nel // 2):
                    E(f"v_cvt_pk_bf16_f32 v{p + d}, v{u + 2 * d}, v{u + 2 * d + 1}")
                for e in range(nel):
                    E(f"v_mul_f32 v{t + e}, s{S_T1}, v{g + e}")
                for d in range(nel // 2):
                    E(f"v_lshlrev_b32 v{u + 2 * d}, 16, v{p + d}")
                    E(f"v_and_b32 v{u + 2 * d + 1}, s{S_T2}, v{p + d}")
                for e in range(nel):
                    E(f"v_exp_f32 v{t + e}, v{t + e}")
                for e in range(nel):
                    E(f"v_add_f32 v{t + e}, 1.0, v{t + e}")
                for e in range(nel):
                    E(f"v_rcp_f32 v{t + e}, v{t + e}")
                E("s_nop 0")
                for d in range(nel // 2):
                    E(f"v_cvt_pk_bf16_f32 v{p + d}, v{t + 2 * d}, v{t + 2 * d + 1}")
                for d in range(nel // 2):
                    E(f"v_lshlrev_b32 v{t + 2 * d}, 16, v{p + d}")
                    E(f"v_and_b32 v{t + 2 * d + 1}, s{S_T2}, v{p + d}")
                for e in range(nel):
                    E(f"v_mul_f32 v{t + e}, v{t + e}, v{u + e}")
                for d in range(nel // 2):
                    E(f"v_cvt_pk_bf16_f32 v{o + d}, v{t + 2 * d}, v{t + 2 * d + 1}")
                so = soff(mb * 16 * c.ldc + blk[1] * 2)
                if npair == 2:
                    E(f"buffer_store_dwordx4 v[{o}:{o + 3}], v{vStP}, {srdC}, {so} offen")
                else:
                    E(f"buffer_store_dwordx2 v[{o}:{o + 1}], v{vStQ}, {srdC}, {so} offen")
                nb += npair
    E.label(f"{name}_end")
    nv = accum_offset + nacc
    assert accum_offset <= 256 and nv <= 512, (accum_offset, nv)
    kernel_footer(E, name, nv, 48, accum_offset)
    return E.text(), lds_bytes, nw * 64
```

```python
from asmlib import *
from gemm import KARG, WS, MB, build_srd

ROWS, D = 2048, 1024


def wave_sum(E, v, sdst):
    E("s_nop 1")
    for sh in (1, 2, 4, 8):
        E(f"v_add_f32_dpp v{v}, v{v}, v{v} row_shr:{sh} row_mask:0xf bank_mask:0xf")
        E("s_nop 1")
    E(f"v_add_f32_dpp v{v}, v{v}, v{v} row_bcast:15 row_mask:0xa bank_mask:0xf")
    E("s_nop 1")
    E(f"v_add_f32_dpp v{v}, v{v}, v{v} row_bcast:31 row_mask:0xc bank_mask:0xf")
    E("s_nop 1")
    E(f"v_readlane_b32 s{sdst}, v{v}, 63")
    E("s_nop 1")


def gen_ln(name, mode, xsrc):
    E = Emit()
    kernel_header(E, name)
    E(f"s_cmp_ge_u32 s2, {ROWS // 4}")
    E(f"s_cbranch_scc1 {name}_end")
    E(f"s_load_dwordx2 s[4:5], s[0:1], {KARG['A_x']}")
    E(f"s_load_dwordx2 s[6:7], s[0:1], {KARG['ws']}")
    E(f"s_load_dwordx2 s[8:9], s[0:1], {KARG['out']}")
    E("s_waitcnt lgkmcnt(0)")
    SX, SP1, SP2, SXO, SLN = 12, 16, 20, 24, 28
    if xsrc == 'in':
        build_srd(E, SX, 4, 0, ROWS * D * 2)
    else:
        build_srd(E, SX, 6, WS['X'], WS['X'] + ROWS * D * 2)
    if mode == 'A':
        build_srd(E, SP1, 6, WS['P'], WS['P'] + ROWS * D * 2)
        build_srd(E, SP2, 6, WS['P'] + ROWS * D * 2, WS['P'] + 2 * ROWS * D * 2)
    elif mode in ('B', 'final'):
        build_srd(E, SP1, 6, WS['Q'], WS['Q'] + ROWS * D * 4)
        build_srd(E, SP2, 6, WS['Q'] + ROWS * D * 4, WS['Q'] + 2 * ROWS * D * 4)
    if mode == 'final':
        build_srd(E, SXO, 8, 0, ROWS * D * 2)
    elif mode != 'first':
        build_srd(E, SXO, 6, WS['X'], WS['X'] + ROWS * D * 2)
    if mode != 'final':
        build_srd(E, SLN, 6, WS['LN'], WS['LN'] + ROWS * D * 2)
    E("s_mov_b32 s32, 0xffff0000")

    V = VAlloc(1)
    vLane, vW, vOff, vOffQ = V.alloc(), V.alloc(), V.alloc(), V.alloc()
    E(f"v_and_b32 v{vLane}, 63, v0")
    E(f"v_lshrrev_b32 v{vW}, 6, v0")
    E("s_lshl_b32 s3, s2, 2")
    E(f"v_add_u32 v{vW}, s3, v{vW}")
    E(f"v_lshlrev_b32 v{vOff}, 11, v{vW}")
    E(f"v_lshl_add_u32 v{vOff}, v{vLane}, 4, v{vOff}")
    E(f"v_lshlrev_b32 v{vOffQ}, 12, v{vW}")
    E(f"v_lshl_add_u32 v{vOffQ}, v{vLane}, 5, v{vOffQ}")
    xr = V.alloc(8, 4)
    E(f"buffer_load_dwordx4 v[{xr}:{xr + 3}], v{vOff}, s[{SX}:{SX + 3}], 0 offen")
    E(f"buffer_load_dwordx4 v[{xr + 4}:{xr + 7}], v{vOff}, s[{SX}:{SX + 3}], 0 offen offset:1024")
    nload = 2
    if mode == 'A':
        p1, p2 = V.alloc(8, 4), V.alloc(8, 4)
        for (r, s) in ((p1, SP1), (p2, SP2)):
            E(f"buffer_load_dwordx4 v[{r}:{r + 3}], v{vOff}, s[{s}:{s + 3}], 0 offen")
            E(f"buffer_load_dwordx4 v[{r + 4}:{r + 7}], v{vOff}, s[{s}:{s + 3}], 0 offen offset:1024")
    elif mode in ('B', 'final'):
        q0, q1 = V.alloc(16, 4), V.alloc(16, 4)
        for (r, s) in ((q0, SP1), (q1, SP2)):
            for ch in range(2):
                for hf in range(2):
                    E(f"buffer_load_dwordx4 v[{r + ch * 8 + hf * 4}:{r + ch * 8 + hf * 4 + 3}], v{vOffQ}, "
                      f"s[{s}:{s + 3}], 0 offen offset:{ch * 2048 + hf * 16}")
    xf = V.alloc(16)
    yf = V.alloc(16)
    pk = V.alloc(8, 4)

    def unpack(dst, src, n):
        for d in range(n):
            E(f"v_lshlrev_b32 v{dst + 2 * d}, 16, v{src + d}")
            E(f"v_and_b32 v{dst + 2 * d + 1}, s32, v{src + d}")

    def pack(dst, src, n):
        for d in range(n):
            E(f"v_cvt_pk_bf16_f32 v{dst + d}, v{src + 2 * d}, v{src + 2 * d + 1}")

    E("s_waitcnt vmcnt(0)")
    unpack(xf, xr, 8)
    if mode != 'first':
        if mode == 'A':
            t1 = V.alloc(16)
            unpack(yf, p1, 8)
            unpack(t1, p2, 8)
            for e in range(16):
                E(f"v_sub_f32 v{yf + e}, v{yf + e}, v{t1 + e}")
        else:
            for e in range(16):
                E(f"v_add_f32 v{yf + e}, v{q0 + e}, v{q1 + e}")
        pack(pk, yf, 8)
        unpack(yf, pk, 8)
        for e in range(16):
            E(f"v_add_f32 v{xf + e}, v{xf + e}, v{yf + e}")
        pack(pk, xf, 8)
        unpack(xf, pk, 8)
        E(f"buffer_store_dwordx4 v[{pk}:{pk + 3}], v{vOff}, s[{SXO}:{SXO + 3}], 0 offen")
        E(f"buffer_store_dwordx4 v[{pk + 4}:{pk + 7}], v{vOff}, s[{SXO}:{SXO + 3}], 0 offen offset:1024")
    if mode != 'final':
        vs = V.alloc()
        E(f"v_add_f32 v{vs}, v{xf}, v{xf + 1}")
        for e in range(2, 16):
            E(f"v_add_f32 v{vs}, v{vs}, v{xf + e}")
        wave_sum(E, vs, 34)
        vmean, vmb, vtmp = V.alloc(), V.alloc(), V.alloc()
        E(f"v_mov_b32 v{vmean}, 0x3a800000")
        E(f"v_mul_f32 v{vmean}, s34, v{vmean}")
        E(f"v_cvt_pk_bf16_f32 v{vmb}, v{vmean}, v{vmean}")
        E(f"v_and_b32 v{vmb}, s32, v{vmb}")
        E(f"v_sub_f32 v{vtmp}, v{xf}, v{vmean}")
        E(f"v_mul_f32 v{vs}, v{vtmp}, v{vtmp}")
        for e in range(1, 16):
            E(f"v_sub_f32 v{vtmp}, v{xf + e}, v{vmean}")
            E(f"v_fmac_f32 v{vs}, v{vtmp}, v{vtmp}")
        wave_sum(E, vs, 35)
        vv, vr_ = V.alloc(), V.alloc()
        E(f"v_mov_b32 v{vv}, 0x3a800000")
        E(f"v_mul_f32 v{vv}, s35, v{vv}")
        E(f"v_cvt_pk_bf16_f32 v{vv}, v{vv}, v{vv}")
        E(f"v_and_b32 v{vv}, s32, v{vv}")
        E(f"v_add_f32 v{vv}, 0x3727c5ac, v{vv}")
        E(f"v_cvt_pk_bf16_f32 v{vv}, v{vv}, v{vv}")
        E(f"v_and_b32 v{vv}, s32, v{vv}")
        E(f"v_sqrt_f32 v{vv}, v{vv}")
        E("s_nop 0")
        E(f"v_cvt_pk_bf16_f32 v{vv}, v{vv}, v{vv}")
        E(f"v_and_b32 v{vv}, s32, v{vv}")
        E(f"v_rcp_f32 v{vr_}, v{vv}")
        for e in range(16):
            E(f"v_sub_f32 v{yf + e}, v{xf + e}, v{vmb}")
        pack(pk, yf, 8)
        unpack(yf, pk, 8)
        for e in range(16):
            E(f"v_mul_f32 v{xf + e}, v{yf + e}, v{vr_}")
        for e in range(16):
            E(f"v_fma_f32 v{yf + e}, -v{xf + e}, v{vv}, v{yf + e}")
        for e in range(16):
            E(f"v_fmac_f32 v{xf + e}, v{yf + e}, v{vr_}")
        pk2 = V.alloc(8, 4)
        pack(pk2, xf, 8)
        E(f"buffer_store_dwordx4 v[{pk2}:{pk2 + 3}], v{vOff}, s[{SLN}:{SLN + 3}], 0 offen")
        E(f"buffer_store_dwordx4 v[{pk2 + 4}:{pk2 + 7}], v{vOff}, s[{SLN}:{SLN + 3}], 0 offen offset:1024")
    E.label(f"{name}_end")
    nv = align4(V.hi)
    kernel_footer(E, name, nv, 40, nv)
    return E.text()


def gen_transpose(name):
    E = Emit()
    kernel_header(E, name)
    NT = 896
    E(f"s_cmp_ge_u32 s2, {3 * NT}")
    E(f"s_cbranch_scc1 {name}_end")
    E(f"s_load_dwordx2 s[4:5], s[0:1], {KARG['w_gate']}")
    E(f"s_load_dwordx2 s[6:7], s[0:1], {KARG['w_up']}")
    E(f"s_load_dwordx2 s[8:9], s[0:1], {KARG['w_down']}")
    E(f"s_load_dwordx2 s[10:11], s[0:1], {KARG['ws']}")
    E("s_waitcnt lgkmcnt(0)")
    E(f"s_cmp_ge_u32 s2, {NT}")
    E("s_cselect_b32 s20, 1, 0")
    E(f"s_cmp_ge_u32 s2, {2 * NT}")
    E("s_cselect_b32 s21, 1, 0")
    E("s_add_u32 s20, s20, s21")
    E(f"s_mul_i32 s21, s20, {NT}")
    E("s_sub_u32 s21, s2, s21")
    E("s_and_b32 s22, s21, 15")
    E("s_lshr_b32 s23, s21, 4")
    E("s_cmp_eq_u32 s20, 2")
    E("s_cselect_b32 s24, s23, s22")
    E("s_cselect_b32 s25, s22, s23")
    E("s_movk_i32 s34, 2048")
    E("s_movk_i32 s35, 7168")
    E("s_cselect_b32 s26, s34, s35")
    E("s_cselect_b32 s27, s35, s34")
    E("s_cmp_eq_u32 s20, 1")
    E("s_cselect_b64 s[12:13], s[6:7], s[4:5]")
    E("s_cmp_eq_u32 s20, 2")
    E("s_cselect_b64 s[12:13], s[8:9], s[12:13]")
    build_srd(E, 16, 12, 0, 1024 * 3584 * 2)
    E("s_cmp_eq_u32 s20, 2")
    E(f"s_mov_b32 s34, {WS['WGU']}")
    E(f"s_cselect_b32 s28, {WS['WD']}, s34")
    E("s_add_u32 s12, s10, s28")
    E("s_addc_u32 s13, s11, 0")
    build_srd(E, 40, 12, 0, 7168 * 2048)
    V = VAlloc(1)
    vc, vrow, vcc_, voff, vl = V.alloc(), V.alloc(), V.alloc(), V.alloc(), V.alloc()
    d0 = V.alloc(8, 4)
    E(f"v_lshrrev_b32 v{vrow}, 3, v0")
    E(f"v_and_b32 v{vcc_}, 7, v0")
    E("s_lshl_b32 s29, s24, 6")
    E(f"v_add_u32 v{voff}, s29, v{vrow}")
    E(f"v_mul_lo_u32 v{voff}, v{voff}, s26")
    E("s_lshl_b32 s30, s25, 7")
    E(f"v_lshl_add_u32 v{vc}, v{vcc_}, 4, s30")
    E(f"v_add_u32 v{voff}, v{voff}, v{vc}")
    E("s_lshl_b32 s31, s26, 5")
    E(f"buffer_load_dwordx4 v[{d0}:{d0 + 3}], v{voff}, s[16:19], 0 offen")
    E(f"buffer_load_dwordx4 v[{d0 + 4}:{d0 + 7}], v{voff}, s[16:19], s31 offen")
    E(f"v_mul_u32_u24 v{vl}, 144, v{vrow}")
    E(f"v_lshl_add_u32 v{vl}, v{vcc_}, 4, v{vl}")
    E("s_waitcnt vmcnt(0)")
    E(f"ds_write_b128 v{vl}, v[{d0}:{d0 + 3}]")
    E(f"ds_write_b128 v{vl}, v[{d0 + 4}:{d0 + 7}] offset:{32 * 144}")
    E("s_waitcnt lgkmcnt(0)")
    E("s_barrier")
    E(f"v_mul_u32_u24 v{vl}, {8 * 144}, v{vcc_}")
    E(f"v_lshl_add_u32 v{vl}, v{vrow}, 1, v{vl}")
    o = V.alloc(8, 4)
    t16 = V.alloc(16)
    for h in range(2):
        for e in range(8):
            E(f"ds_read_u16 v{t16 + 8 * h + e}, v{vl} offset:{e * 144 + h * 64}")
    vf, vq = V.alloc(), V.alloc()
    E("s_lshl_b32 s29, s25, 6")
    E("s_cmp_eq_u32 s20, 1")
    E("s_cselect_b32 s30, 112, 0")
    E("s_lshl_b32 s31, s24, 7")
    vo = [V.alloc(), V.alloc()]
    for h in range(2):
        E(f"v_add_u32 v{vf}, s29, v{vrow}")
        if h:
            E(f"v_add_u32 v{vf}, 32, v{vf}")
        E(f"v_mul_u32_u24 v{vq}, 9363, v{vf}")
        E(f"v_lshrrev_b32 v{vq}, 20, v{vq}")
        E(f"v_mul_u32_u24 v{vq}, 112, v{vq}")
        E(f"v_add_u32 v{vq}, s30, v{vq}")
        E("s_cmp_eq_u32 s20, 2")
        E("s_cselect_b32 s33, 0, -1")
        E(f"v_and_b32 v{vq}, s33, v{vq}")
        E(f"v_add_u32 v{vf}, v{vf}, v{vq}")
        E(f"v_mul_lo_u32 v{vo[h]}, v{vf}, s27")
        E(f"v_lshl_add_u32 v{vf}, v{vcc_}, 4, s31")
        E(f"v_add_u32 v{vo[h]}, v{vo[h]}, v{vf}")
    E("s_waitcnt lgkmcnt(0)")
    for h in range(2):
        for d in range(4):
            E(f"v_lshl_or_b32 v{o + 4 * h + d}, v{t16 + 8 * h + 2 * d + 1}, 16, v{t16 + 8 * h + 2 * d}")
    E(f"buffer_store_dwordx4 v[{o}:{o + 3}], v{vo[0]}, s[40:43], 0 offen")
    E(f"buffer_store_dwordx4 v[{o + 4}:{o + 7}], v{vo[1]}, s[40:43], 0 offen")
    E.label(f"{name}_end")
    nv = align4(V.hi)
    kernel_footer(E, name, nv, 48, nv)
    return E.text(), 64 * 144
```

```python
import sys
import os
sys.path.insert(0, os.path.dirname(os.path.abspath(__file__)))
from asmlib import *
from gemm import *
from misc import gen_ln, gen_transpose

OUT = os.environ.get("GEN_OUT", "interleave_layers__spectral_fnet__glu_gated_glu__prompt.s")

HEADER = """; Kernarg layout for this problem (96 bytes, ptrs only, base s[0:1]):
"""


def common_tile_prologue(E, loads):
    for pair, key in loads:
        E(f"s_load_dwordx2 s[{pair}:{pair + 1}], s[0:1], {KARG[key]}")
    E(f"s_and_b32 s{S_T2}, s2, 7")
    E(f"s_lshr_b32 s{S_T3}, s2, 3")
    E("s_waitcnt lgkmcnt(0)")


def setup_a1(E):
    common_tile_prologue(E, [(S_P0, 'hid_re'), (S_P1, 'hid_im'), (S_WSP, 'ws')])
    E(f"s_lshr_b32 s{S_T0}, s{S_T2}, 1")
    E(f"s_lshl_b32 s{S_T0}, s{S_T0}, 2")
    E(f"s_and_b32 s{S_T1}, s{S_T3}, 3")
    E(f"s_add_u32 s{S_TM}, s{S_T0}, s{S_T1}")
    E(f"s_and_b32 s{S_T0}, s{S_T2}, 1")
    E(f"s_lshl_b32 s{S_T0}, s{S_T0}, 3")
    E(f"s_lshr_b32 s{S_T1}, s{S_T3}, 2")
    E(f"s_add_u32 s{S_TN}, s{S_T0}, s{S_T1}")
    E(f"s_cmp_lt_u32 s{S_TM}, 8")
    E(f"s_cselect_b64 s[{S_P2}:{S_P2 + 1}], s[{S_P0}:{S_P0 + 1}], s[{S_P1}:{S_P1 + 1}]")
    E(f"s_and_b32 s{S_T0}, s{S_TM}, 7")
    E(f"s_mul_i32 s{S_T0}, s{S_T0}, {128 * 2048}")
    build_srd(E, S_SRD_M, S_P2, f"s{S_T0}", 1024 * 1024 * 2)
    ws_ptr(E, S_XP0, WS['LN'])
    E(f"s_mul_i32 s{S_T0}, s{S_TN}, {128 * 2048}")
    build_srd(E, S_SRD_N, S_XP0, f"s{S_T0}", 2048 * 1024 * 2)
    ws_ptr(E, S_XP0, WS['ABT'])
    E(f"s_mul_i32 s{S_T0}, s{S_TM}, {128 * 4096}")
    E(f"s_mul_i32 s{S_T1}, s{S_TN}, {128 * 2}")
    E(f"s_add_u32 s{S_T0}, s{S_T0}, s{S_T1}")
    build_srd(E, S_SRD_C, S_XP0, f"s{S_T0}", 2048 * 2048 * 2)


def tile_z_16x8(E):
    E(f"s_and_b32 s{S_Z}, s{S_T2}, 1")
    E(f"s_lshr_b32 s{S_T0}, s{S_T2}, 1")
    E(f"s_lshl_b32 s{S_T0}, s{S_T0}, 2")
    E(f"s_and_b32 s{S_T1}, s{S_T3}, 3")
    E(f"s_add_u32 s{S_TM}, s{S_T0}, s{S_T1}")
    E(f"s_lshr_b32 s{S_TN}, s{S_T3}, 2")


def setup_a2(E):
    common_tile_prologue(E, [(S_P0, 'seq_re'), (S_P1, 'seq_im'), (S_WSP, 'ws')])
    tile_z_16x8(E)
    E(f"s_cmp_eq_u32 s{S_Z}, 0")
    E(f"s_cselect_b64 s[{S_P2}:{S_P2 + 1}], s[{S_P0}:{S_P0 + 1}], s[{S_P1}:{S_P1 + 1}]")
    E(f"s_mul_i32 s{S_T0}, s{S_TM}, {128 * 4096}")
    build_srd(E, S_SRD_M, S_P2, f"s{S_T0}", 2048 * 2048 * 2)
    ws_ptr(E, S_XP0, WS['ABT'])
    E(f"s_lshl_b32 s{S_T0}, s{S_Z}, 3")
    E(f"s_add_u32 s{S_T0}, s{S_T0}, s{S_TN}")
    E(f"s_mul_i32 s{S_T0}, s{S_T0}, {128 * 4096}")
    build_srd(E, S_SRD_N, S_XP0, f"s{S_T0}", 2048 * 2048 * 2)
    ws_ptr(E, S_XP0, WS['P'])
    E(f"s_mul_i32 s{S_T0}, s{S_Z}, {2048 * 2048}")
    E(f"s_mul_i32 s{S_T1}, s{S_TM}, {128 * 2048}")
    E(f"s_add_u32 s{S_T0}, s{S_T0}, s{S_T1}")
    E(f"s_mul_i32 s{S_T1}, s{S_TN}, {128 * 2}")
    E(f"s_add_u32 s{S_T0}, s{S_T0}, s{S_T1}")
    build_srd(E, S_SRD_C, S_XP0, f"s{S_T0}", 2 * 2048 * 1024 * 2)


def setup_b1(E):
    common_tile_prologue(E, [(S_WSP, 'ws')])
    E(f"s_and_b32 s{S_T0}, s{S_T2}, 1")
    E(f"s_lshl_b32 s{S_T0}, s{S_T0}, 2")
    E(f"s_and_b32 s{S_T1}, s{S_T3}, 3")
    E(f"s_add_u32 s{S_TM}, s{S_T0}, s{S_T1}")
    E(f"s_lshr_b32 s{S_T0}, s{S_T2}, 1")
    E(f"s_lshl_b32 s{S_T0}, s{S_T0}, 3")
    E(f"s_lshr_b32 s{S_T1}, s{S_T3}, 2")
    E(f"s_add_u32 s{S_TN}, s{S_T0}, s{S_T1}")
    ws_ptr(E, S_XP0, WS['LN'])
    E(f"s_mul_i32 s{S_T0}, s{S_TM}, {256 * 2048}")
    build_srd(E, S_SRD_M, S_XP0, f"s{S_T0}", 2048 * 1024 * 2)
    ws_ptr(E, S_XP1, WS['WGU'])
    E(f"s_mul_i32 s{S_T0}, s{S_TN}, {224 * 2048}")
    build_srd(E, S_SRD_N, S_XP1, f"s{S_T0}", 7168 * 2048)
    ws_ptr(E, S_XP0, WS['H'])
    E(f"s_mul_i32 s{S_T0}, s{S_TM}, {256 * 7168}")
    E(f"s_mul_i32 s{S_T1}, s{S_TN}, {112 * 2}")
    E(f"s_add_u32 s{S_T0}, s{S_T0}, s{S_T1}")
    build_srd(E, S_SRD_C, S_XP0, f"s{S_T0}", 2048 * 7168)


def setup_b2(E):
    common_tile_prologue(E, [(S_WSP, 'ws')])
    tile_z_16x8(E)
    ws_ptr(E, S_XP0, WS['H'])
    E(f"s_mul_i32 s{S_T0}, s{S_TM}, {128 * 7168}")
    E(f"s_mul_i32 s{S_T1}, s{S_Z}, {1792 * 2}")
    E(f"s_add_u32 s{S_T0}, s{S_T0}, s{S_T1}")
    build_srd(E, S_SRD_M, S_XP0, f"s{S_T0}", 2048 * 7168)
    ws_ptr(E, S_XP1, WS['WD'])
    E(f"s_mul_i32 s{S_T0}, s{S_TN}, {128 * 7168}")
    E(f"s_add_u32 s{S_T0}, s{S_T0}, s{S_T1}")
    build_srd(E, S_SRD_N, S_XP1, f"s{S_T0}", 1024 * 7168)
    ws_ptr(E, S_XP0, WS['Q'])
    E(f"s_mul_i32 s{S_T0}, s{S_Z}, {2048 * 1024 * 4}")
    E(f"s_mul_i32 s{S_T1}, s{S_TM}, {128 * 4096}")
    E(f"s_add_u32 s{S_T0}, s{S_T0}, s{S_T1}")
    E(f"s_mul_i32 s{S_T1}, s{S_TN}, {128 * 4}")
    E(f"s_add_u32 s{S_T0}, s{S_T0}, s{S_T1}")
    build_srd(E, S_SRD_C, S_XP0, f"s{S_T0}", 2 * 2048 * 1024 * 4)


PAIR64 = [('pair', 0, 0), ('pair', 0, 1), ('pair', 32, 0), ('pair', 32, 1)]
PLAIN64 = [('plain', 0), ('plain', 16), ('plain', 32), ('plain', 48)]
GLU224 = []
for base in (0, 112):
    for q in range(3):
        GLU224 += [('pair', base + 32 * q, 0), ('pair', base + 32 * q, 1)]
    GLU224 += [('plain', base + 96)]

S128 = int(os.environ.get("S128", "4"))

CFGS = {
    'gemm_a1_kernel': GemmCfg(wm=2, wn=2, bm=4, nblocks=PAIR64, tn_rows=64, K=1024, S=S128, nwg=256,
                              pitchM=2048, pitchN=2048, ldc=4096, epi='bf16', setup=setup_a1),
    'gemm_a2_kernel': GemmCfg(wm=2, wn=2, bm=4, nblocks=PAIR64, tn_rows=64, K=2048, S=S128, nwg=256,
                              pitchM=4096, pitchN=4096, ldc=2048, epi='bf16', setup=setup_a2),
    'gemm_b1_kernel': GemmCfg(wm=4, wn=1, bm=4, nblocks=GLU224, tn_rows=224, ncol_wave=112, K=1024, S=2, nwg=256,
                              pitchM=2048, pitchN=2048, ldc=7168, epi='glu', setup=setup_b1),
    'gemm_b2_kernel': GemmCfg(wm=2, wn=2, bm=4, nblocks=PLAIN64, tn_rows=64, K=1792, S=S128, nwg=256,
                              pitchM=7168, pitchN=7168, ldc=4096, epi='f32', setup=setup_b2),
}


def main():
    body = []
    launches = []
    mods = {}
    for name, cfg in CFGS.items():
        txt, lds, threads = gen_gemm(name, cfg)
        body.append(txt)
        mods[name] = (256, threads, lds)
    body.append(gen_ln('ln_first_kernel', 'first', 'in'))
    body.append(gen_ln('ln_a_in_kernel', 'A', 'in'))
    body.append(gen_ln('ln_a_ws_kernel', 'A', 'ws'))
    body.append(gen_ln('ln_b_kernel', 'B', 'ws'))
    body.append(gen_ln('ln_final_kernel', 'final', 'ws'))
    for n in ('ln_first_kernel', 'ln_a_in_kernel', 'ln_a_ws_kernel', 'ln_b_kernel', 'ln_final_kernel'):
        mods[n] = (512, 256, 0)
    txt, lds = gen_transpose('wtrans_kernel')
    body.append(txt)
    mods['wtrans_kernel'] = (2688, 256, lds)

    order = ['wtrans_kernel', 'ln_first_kernel', 'gemm_a1_kernel', 'gemm_a2_kernel', 'ln_a_in_kernel',
             'gemm_b1_kernel', 'gemm_b2_kernel', 'ln_b_kernel', 'gemm_a1_kernel', 'gemm_a2_kernel',
             'ln_a_ws_kernel', 'gemm_b1_kernel', 'gemm_b2_kernel', 'ln_final_kernel']
    hdr = HEADER
    for k in order:
        g, t, l = mods[k]
        hdr += f"; @launch kernel={k} grid=({g},1,1) block=({t},1,1) lds={l}\n"
    out = hdr + '.amdgcn_target "amdgcn-amd-amdhsa--gfx950"\n' + "\n".join(body)
    with open(OUT, "w") as f:
        f.write(out)
    print("wrote", OUT, len(out), "bytes")


if __name__ == "__main__":
    main()
```

```python
import os
from asmlib import *

MB = 1 << 20
KARG = dict(A_x=0, seq_re=8, seq_im=16, hid_re=24, hid_im=32, B_x=40, w_gate=48, w_up=56,
            w_down=64, out=72, dbg=80, ws=88)
WS = dict(LN=0, ABT=4 * MB, P=12 * MB, X=20 * MB, H=24 * MB, Q=40 * MB, WGU=56 * MB, WD=72 * MB)

BK = 64
ROWB = BK * 2

S_SRD_M, S_SRD_N, S_SRD_C = 8, 12, 16
S_TM, S_TN, S_Z = 20, 21, 22
S_WAVE, S_M0M, S_M0N, S_KOFF, S_CNT = 24, 25, 26, 27, 28
S_T0, S_T1, S_T2, S_T3 = 29, 30, 31, 34
S_P0, S_P1 = 4, 6
S_P2 = 32
S_WSP = 36
S_XP0, S_XP1 = 38, 40
S_SRD_N2 = 44
S_KOFFN = 42


def build_srd(E, srd, ptr, off, size):
    if isinstance(off, int):
        if off == 0:
            E(f"s_mov_b32 s{srd}, s{ptr}")
            E(f"s_mov_b32 s{srd + 1}, s{ptr + 1}")
        else:
            E(f"s_add_u32 s{srd}, s{ptr}, {off}")
            E(f"s_addc_u32 s{srd + 1}, s{ptr + 1}, 0")
        E(f"s_mov_b32 s{srd + 2}, {size - off}")
    else:
        E(f"s_add_u32 s{srd}, s{ptr}, {off}")
        E(f"s_addc_u32 s{srd + 1}, s{ptr + 1}, 0")
        E(f"s_sub_u32 s{srd + 2}, {size}, {off}")
    E(f"s_mov_b32 s{srd + 3}, 0x20000")


def ws_ptr(E, dst, wsoff):
    if wsoff == 0:
        E(f"s_mov_b32 s{dst}, s{S_WSP}")
        E(f"s_mov_b32 s{dst + 1}, s{S_WSP + 1}")
    else:
        E(f"s_add_u32 s{dst}, s{S_WSP}, {wsoff}")
        E(f"s_addc_u32 s{dst + 1}, s{S_WSP + 1}, 0")


def key_of_row(r):
    return (r & 3) | ((r >> 1) & 4)


class GemmCfg:
    def __init__(self, **kw):
        self.__dict__.update(kw)


def gen_gemm(name, cfg):
    c = cfg
    E = Emit()
    nw = c.wm * c.wn
    TM = c.wm * c.bm * 16
    TN = c.wn * c.tn_rows
    assert TM % (8 * nw) == 0 and (TN % (8 * nw) == 0 or getattr(c, 'ntr', False)), (TM, TN, nw)
    ntr = getattr(c, 'ntr', False)
    ndM, ndN = TM // 8 // nw, TN // 8 // nw
    if ntr:
        nreg = c.nregions
        per_reg = 16 // nw
        ndN = nreg * per_reg
        stage_bytes = TM * ROWB + nreg * 16384
    else:
        stage_bytes = (TM + TN) * ROWB
    nd = ndM + ndN
    lds_bytes = stage_bytes * c.S
    niter = c.K // BK
    assert c.K % BK == 0 and niter % c.S == 0 and niter >= 2 * c.S
    bn = len(c.nblocks)
    nacc = bn * c.bm * 4
    nhi = 2 if lds_bytes > 65536 else 1

    stamp_on = getattr(c, 'stamp', False)
    nst = [0]

    def stamp():
        if stamp_on:
            E("s_waitcnt lgkmcnt(0)")
            E(f"s_memtime s[{64 + 2 * nst[0]}:{65 + 2 * nst[0]}]")
            E("s_waitcnt lgkmcnt(0)")
            nst[0] += 1

    kernel_header(E, name)
    E(f"s_cmp_ge_u32 s2, {c.nwg}")
    E(f"s_cbranch_scc1 {name}_end")
    stamp()
    c.setup(E)
    V = VAlloc(1)
    vLane = V.alloc()
    vWave = V.alloc()
    vT = [V.alloc() for _ in range(6)]
    vDM = [V.alloc() for _ in range(ndM)]
    vDN = [V.alloc() for _ in range(per_reg if ntr else ndN)]
    E(f"v_and_b32 v{vLane}, 63, v0")
    E(f"v_lshrrev_b32 v{vWave}, 6, v0")
    E("s_nop 0")
    E(f"v_readfirstlane_b32 s{S_WAVE}, v{vWave}")
    nl = getattr(c, 'loaders', 0)
    if nl:
        assert nl == nw
        E("s_nop 3")
        E(f"s_cmp_lt_u32 s{S_WAVE}, {nw}")
        E(f"s_cbranch_scc1 {name}_compute")
        E(f"s_sub_u32 s{S_WAVE}, s{S_WAVE}, {nw}")
        E(f"v_subrev_u32 v{vWave}, {nw}, v{vWave}")
    E(f"v_lshrrev_b32 v{vT[0]}, 3, v{vLane}")
    E(f"v_and_b32 v{vT[1]}, 7, v{vLane}")

    def dma_offsets(vlist, ndx, pitch):
        for t in range(ndx):
            E(f"v_mul_u32_u24 v{vT[2]}, {ndx * 8}, v{vWave}")
            E(f"v_add_u32 v{vT[2]}, v{vT[2]}, v{vT[0]}")
            if t:
                E(f"v_add_u32 v{vT[2]}, {t * 8}, v{vT[2]}")
            E(f"v_and_b32 v{vT[3]}, 3, v{vT[2]}")
            E(f"v_lshrrev_b32 v{vT[4]}, 1, v{vT[2]}")
            E(f"v_and_or_b32 v{vT[3]}, v{vT[4]}, 4, v{vT[3]}")
            E(f"v_xor_b32 v{vT[3]}, v{vT[3]}, v{vT[1]}")
            E(f"v_lshlrev_b32 v{vT[3]}, 4, v{vT[3]}")
            E(f"v_mul_u32_u24 v{vlist[t]}, {pitch}, v{vT[2]}")
            E(f"v_add_u32 v{vlist[t]}, v{vlist[t]}, v{vT[3]}")

    dma_offsets(vDM, ndM, c.pitchM)
    if not ntr:
        dma_offsets(vDN, ndN, c.pitchN)
    else:
        E(f"v_lshrrev_b32 v{vT[0]}, 4, v{vLane}")
        E(f"v_and_b32 v{vT[1]}, 15, v{vLane}")
        for t in range(per_reg):
            E(f"v_mul_u32_u24 v{vT[2]}, {per_reg * 4}, v{vWave}")
            E(f"v_add_u32 v{vT[2]}, v{vT[2]}, v{vT[0]}")
            if t:
                E(f"v_add_u32 v{vT[2]}, {t * 4}, v{vT[2]}")
            E(f"v_and_b32 v{vT[3]}, 3, v{vT[2]}")
            E(f"v_lshrrev_b32 v{vT[4]}, 1, v{vT[2]}")
            E(f"v_and_or_b32 v{vT[3]}, v{vT[4]}, 4, v{vT[3]}")
            E(f"v_lshlrev_b32 v{vT[3]}, 1, v{vT[3]}")
            E(f"v_xor_b32 v{vT[3]}, v{vT[3]}, v{vT[1]}")
            E(f"v_lshlrev_b32 v{vT[3]}, 4, v{vT[3]}")
            E(f"v_mul_u32_u24 v{vDN[t]}, {c.pitchN}, v{vT[2]}")
            E(f"v_add_u32 v{vDN[t]}, v{vDN[t]}, v{vT[3]}")
    E(f"s_mul_i32 s{S_M0M}, s{S_WAVE}, {ndM * 1024}")
    E(f"s_mul_i32 s{S_M0N}, s{S_WAVE}, {(per_reg if ntr else ndN) * 1024}")
    E(f"s_add_u32 s{S_M0N}, s{S_M0N}, {TM * ROWB}")
    E(f"s_mov_b32 s{S_KOFF}, 0")
    if ntr:
        E(f"s_mov_b32 s{S_KOFFN}, 0")

    dma_count = [0]

    def dma_instrs(stage):
        out = []
        for t in range(ndM):
            out.append((f"s_add_u32 m0, s{S_M0M}, {stage * stage_bytes + t * 1024}",
                        f"buffer_load_dwordx4 v{vDM[t]}, s[{S_SRD_M}:{S_SRD_M + 3}], s{S_KOFF} offen lds"))
        for t in range(ndN):
            if ntr:
                reg, tt = t // per_reg, t % per_reg
                srd = S_SRD_N if reg == 0 else S_SRD_N2
                out.append((f"s_add_u32 m0, s{S_M0N}, {stage * stage_bytes + reg * 16384 + tt * 1024}",
                            f"buffer_load_dwordx4 v{vDN[tt]}, s[{srd}:{srd + 3}], s{S_KOFFN} offen lds"))
            else:
                out.append((f"s_add_u32 m0, s{S_M0N}, {stage * stage_bytes + t * 1024}",
                            f"buffer_load_dwordx4 v{vDN[t]}, s[{S_SRD_N}:{S_SRD_N + 3}], s{S_KOFF} offen lds"))
        return out

    if os.environ.get('EXP_DMA2VGPR'):
        vDummy = V.alloc(4, 4)
        vZero = V.alloc()
        E(f"v_mov_b32 v{vZero}, 0")
        _orig_dma = dma_instrs

        def dma_instrs(stage):
            out = []
            for m0i, ld in _orig_dma(stage):
                parts = ld.split()
                if os.environ.get('EXP_DMA2VGPR') == '1':
                    out.append((m0i, f"buffer_load_dwordx4 v[{vDummy}:{vDummy + 3}], {parts[1]} {parts[2]} {parts[3]} offen"))
                elif os.environ.get('EXP_DMA2VGPR') == '2':
                    out.append((m0i, f"buffer_load_dword v{vDummy}, {parts[1]} {parts[2]} {parts[3]} offen"))
                else:
                    out.append((m0i, f"buffer_load_dwordx4 v[{vDummy}:{vDummy + 3}], v{vZero}, {parts[2]} {parts[3]} offen"))
            return out

    def emit_dma_stage(stage):
        for m0i, ld in dma_instrs(stage):
            E(m0i)
            E("s_nop 0")
            E(ld)
        E(f"s_add_u32 s{S_KOFF}, s{S_KOFF}, {ROWB}")
        if ntr:
            E(f"s_add_u32 s{S_KOFFN}, s{S_KOFFN}, {BK * c.pitchN}")

    for st in range(c.S):
        emit_dma_stage(st)
    if nl:
        E(f"s_waitcnt vmcnt({nd * (c.S - 1)})")
        E("s_barrier")
        E(f"s_mov_b32 s{S_CNT}, {(niter - c.S) // c.S}")
        E.label(f"{name}_lloop")
        for st in range(c.S):
            E(f"s_waitcnt vmcnt({nd * (c.S - 2)})")
            E("s_barrier")
            emit_dma_stage(st)
        E(f"s_sub_u32 s{S_CNT}, s{S_CNT}, 1")
        E(f"s_cmp_lg_u32 s{S_CNT}, 0")
        E(f"s_cbranch_scc1 {name}_lloop")
        for j in range(c.S - 1):
            it = niter - c.S + j
            E(f"s_waitcnt vmcnt({nd * max(0, niter - it - 2)})")
            E("s_barrier")
        E("s_endpgm")
        E.label(f"{name}_compute")

    vY = [[V.alloc() for _ in range(2)] for _ in range(nhi)]
    kinds = sorted(set(b[0] for b in c.nblocks))
    vX = {k: [[V.alloc() for _ in range(2)] for _ in range(nhi)] for k in kinds}
    vI, vG = vT[0], vT[1]
    E(f"v_and_b32 v{vI}, 15, v{vLane}")
    E(f"v_lshrrev_b32 v{vG}, 4, v{vLane}")
    E(f"v_and_b32 v{vT[2]}, {c.wm - 1}, v{vWave}")
    lg = c.wm.bit_length() - 1
    E(f"v_lshrrev_b32 v{vT[3]}, {lg}, v{vWave}")

    def frag_addr(dst_list, rowl_reg, wave_reg, rows_per_wave, region_off):
        E(f"v_and_b32 v{vT[4]}, 3, v{rowl_reg}")
        E(f"v_lshrrev_b32 v{vT[5]}, 1, v{rowl_reg}")
        E(f"v_and_or_b32 v{vT[4]}, v{vT[5]}, 4, v{vT[4]}")
        E(f"v_xor_b32 v{vT[4]}, v{vT[4]}, v{vG}")
        E(f"v_lshlrev_b32 v{vT[4]}, 4, v{vT[4]}")
        E(f"v_mul_u32_u24 v{vT[5]}, {rows_per_wave}, v{wave_reg}")
        E(f"v_add_u32 v{vT[5]}, v{vT[5]}, v{rowl_reg}")
        E(f"v_lshlrev_b32 v{vT[5]}, 7, v{vT[5]}")
        E(f"v_add_u32 v{dst_list[0][0]}, v{vT[5]}, v{vT[4]}")
        if region_off:
            E(f"v_add_u32 v{dst_list[0][0]}, {region_off}, v{dst_list[0][0]}")
        E(f"v_xor_b32 v{dst_list[0][1]}, 64, v{dst_list[0][0]}")
        if nhi == 2:
            E(f"v_add_u32 v{dst_list[1][0]}, 0x10000, v{dst_list[0][0]}")
            E(f"v_add_u32 v{dst_list[1][1]}, 0x10000, v{dst_list[0][1]}")

    frag_addr(vY, vI, vT[2], c.bm * 16, 0)
    vRowP = V.alloc()
    vXT = {}
    if ntr:
        kinds = []
        vR, vC, vK = V.alloc(), V.alloc(), V.alloc()
        E(f"v_lshrrev_b32 v{vR}, 2, v{vI}")
        E(f"v_and_b32 v{vC}, 3, v{vI}")
        E(f"v_and_b32 v{vK}, 1, v{vG}")
        E(f"v_lshl_or_b32 v{vK}, v{vK}, 2, v{vR}")
        E(f"v_lshl_add_u32 v{vRowP}, v{vG}, 3, v{vR}")
        E(f"v_lshlrev_b32 v{vRowP}, 8, v{vRowP}")
        E(f"v_add_u32 v{vRowP}, {TM * ROWB}, v{vRowP}")
        wn_reg = getattr(c, 'wn_is_region', False)
        if wn_reg:
            E(f"v_lshl_add_u32 v{vRowP}, v{vT[3]}, 14, v{vRowP}")
        for blk in c.nblocks:
            kid = (blk[0], blk[1])
            if kid in vXT:
                continue
            regs = [V.alloc() for _ in range(nhi)]
            vXT[kid] = regs
            if blk[0] == 'pair':
                E(f"v_mul_u32_u24 v{vT[4]}, {c.tn_rows // 8}, v{vT[3]}") if (c.wn > 1 and not wn_reg) else E(f"v_mov_b32 v{vT[4]}, 0")
                E(f"v_add_u32 v{vT[4]}, {blk[1] // 8}, v{vT[4]}")
                E(f"v_add_u32 v{vT[4]}, v{vT[4]}, v{vC}")
                E(f"v_lshlrev_b32 v{vT[5]}, 1, v{vK}")
                E(f"v_xor_b32 v{vT[4]}, v{vT[4]}, v{vT[5]}")
                E(f"v_lshl_add_u32 v{regs[0]}, v{vT[4]}, 4, v{vRowP}")
            else:
                E(f"v_mul_u32_u24 v{vT[4]}, {c.tn_rows // 16}, v{vT[3]}") if (c.wn > 1 and not wn_reg) else E(f"v_mov_b32 v{vT[4]}, 0")
                E(f"v_add_u32 v{vT[4]}, {blk[1] // 16}, v{vT[4]}")
                E(f"v_xor_b32 v{vT[4]}, v{vT[4]}, v{vK}")
                E(f"v_lshl_add_u32 v{regs[0]}, v{vT[4]}, 5, v{vRowP}")
                E(f"v_lshl_add_u32 v{regs[0]}, v{vC}, 3, v{regs[0]}")
            if nhi == 2:
                E(f"v_add_u32 v{regs[1]}, 0x10000, v{regs[0]}")
    for k in kinds:
        if k == 'plain':
            frag_addr(vX[k], vI, vT[3], c.tn_rows, TM * ROWB)
        else:
            E(f"v_lshrrev_b32 v{vRowP}, 2, v{vI}")
            E(f"v_lshlrev_b32 v{vRowP}, 3, v{vRowP}")
            E(f"v_and_or_b32 v{vRowP}, v{vI}, 3, v{vRowP}")
            frag_addr(vX[k], vRowP, vT[3], c.tn_rows, TM * ROWB)

    esz = 4 if c.epi == 'f32' else 2
    vStP = V.alloc()
    vStQ = V.alloc()
    ncol_wave = c.ncol_wave if hasattr(c, 'ncol_wave') else c.tn_rows
    E(f"v_mul_u32_u24 v{vT[4]}, {c.bm * 16}, v{vT[2]}")
    E(f"v_add_u32 v{vT[4]}, v{vT[4]}, v{vI}")
    E(f"v_mul_u32_u24 v{vT[4]}, {c.ldc}, v{vT[4]}")
    if not getattr(c, 'wn_is_region', False):
        E(f"v_mul_u32_u24 v{vT[5]}, {ncol_wave * esz}, v{vT[3]}")
        E(f"v_add_u32 v{vT[4]}, v{vT[4]}, v{vT[5]}")
    vXch = V.alloc()
    E(f"v_lshlrev_b32 v{vXch}, 4, v{vLane}")
    E(f"v_lshl_add_u32 v{vXch}, v{vT[2]}, 14, v{vXch}")
    E(f"v_lshl_add_u32 v{vStP}, v{vG}, 4, v{vT[4]}")
    E(f"v_lshl_add_u32 v{vStQ}, v{vG}, 3, v{vT[4]}")

    FY = [[V.alloc(4, 4) for _ in range(c.bm)] for _ in range(2)]
    FX = [[V.alloc(4, 4) for _ in range(bn)] for _ in range(2)]
    accum_offset = align4(V.hi)

    def acc(nb, mb):
        return (nb * c.bm + mb) * 4

    for i in range(nacc):
        E(f"v_accvgpr_write_b32 a{i}, 0")

    def reads(stage, kk):
        out = []
        base = stage * stage_bytes
        xs, ys = [], []
        for mb in range(c.bm):
            off = base + mb * 16 * ROWB
            hi, off = off >> 16, off & 0xffff
            ys.append(f"ds_read_b128 v[{FY[kk][mb]}:{FY[kk][mb] + 3}], v{vY[hi][kk]} offset:{off}")
        for nb, blk in enumerate(c.nblocks):
            if ntr:
                reg = blk[-1]
                for h in range(2):
                    off = base + reg * 16384 + kk * 8192 + h * 1024 + (8 * blk[2] if blk[0] == 'pair' else 0)
                    hi, off = off >> 16, off & 0xffff
                    xs.append(f"ds_read_b64_tr_b16 v[{FX[kk][nb] + 2 * h}:{FX[kk][nb] + 2 * h + 1}], "
                              f"v{vXT[(blk[0], blk[1])][hi]} offset:{off}")
                continue
            if blk[0] == 'pair':
                off = base + (blk[1] + 4 * blk[2]) * ROWB
            else:
                off = base + blk[1] * ROWB
            hi, off = off >> 16, off & 0xffff
            xs.append(f"ds_read_b128 v[{FX[kk][nb]}:{FX[kk][nb] + 3}], v{vX[blk[0]][hi][kk]} offset:{off}")
        while xs or ys:
            if xs:
                out.append(xs.pop(0))
            if ys:
                out.append(ys.pop(0))
        return out

    def mfmas(kk):
        out = []
        if os.environ.get('EXP_NOMFMA'):
            return ["s_nop 0"] * 4
        for nb in range(bn):
            for mb in range(c.bm):
                a = acc(nb, mb)
                out.append(f"v_mfma_f32_16x16x32_bf16 a[{a}:{a + 3}], v[{FX[kk][nb]}:{FX[kk][nb] + 3}], "
                           f"v[{FY[kk][mb]}:{FY[kk][mb] + 3}], a[{a}:{a + 3}]")
        return out

    def interleave(ms, sides, per_gap):
        sides = list(sides)
        for i, m in enumerate(ms):
            E(m)
            for _ in range(per_gap):
                if sides:
                    E(sides.pop(0))
        for s in sides:
            E(s)

    if not nl:
        E(f"s_waitcnt vmcnt({nd * (c.S - 1)})")
    E("s_barrier")
    stamp()
    for r in reads(0, 0):
        E(r)

    def iteration(stage, do_dma, vm_wait, has_next):
        nxt = (stage + 1) % c.S
        E("s_waitcnt lgkmcnt(0)")
        pg0 = max(1, -(-len(reads(stage, 1)) // max(1, len(mfmas(0)) // 2)))
        interleave(mfmas(0), reads(stage, 1), pg0)
        E("s_waitcnt lgkmcnt(0)")
        if has_next:
            if not nl:
                E(f"s_waitcnt vmcnt({vm_wait})")
            E("s_barrier")
        sides = []
        rd = reads(nxt, 0) if has_next else []
        dm = dma_instrs(stage) if (do_dma and not nl and not os.environ.get('EXP_NODMA')) else []
        while rd or dm:
            if dm:
                m0i, ld = dm.pop(0)
                sides.append(m0i)
                sides.append(rd.pop(0) if rd else "s_nop 0")
                sides.append(ld)
            elif rd:
                sides.append(rd.pop(0))
        if do_dma and not nl:
            sides.append(f"s_add_u32 s{S_KOFF}, s{S_KOFF}, {ROWB}")
            if ntr:
                sides.append(f"s_add_u32 s{S_KOFFN}, s{S_KOFFN}, {BK * c.pitchN}")
        pg1 = max(1, -(-len(sides) // max(1, (len(mfmas(1)) * 3) // 4)))
        interleave(mfmas(1), sides, pg1)

    trips = (niter - c.S) // c.S
    E(f"s_mov_b32 s{S_CNT}, {trips}")
    E.label(f"{name}_loop")
    for st in range(c.S):
        iteration(st, True, nd * (c.S - 2), True)
    E(f"s_sub_u32 s{S_CNT}, s{S_CNT}, 1")
    E(f"s_cmp_lg_u32 s{S_CNT}, 0")
    E(f"s_cbranch_scc1 {name}_loop")
    for j in range(c.S):
        it = niter - c.S + j
        st = it % c.S
        has_next = it < niter - 1
        iteration(st, False, nd * max(0, niter - it - 2), has_next)

    E("s_nop 15")
    E("s_nop 7")
    stamp()
    srdC = f"s[{S_SRD_C}:{S_SRD_C + 3}]"
    tmp = FY[0][0]
    ntmp = (FX[1][bn - 1] + 4) - FY[0][0]
    assert ntmp >= 80 or c.epi not in ('glu', 'glu8')
    rot = [0]

    def soff(val):
        E(f"s_mov_b32 s{S_T0}, {val}")
        return f"s{S_T0}"

    if c.epi in ('bf16', 'f32'):
        sets = 4
        setsz = 8 if c.epi == 'bf16' else 4
        k = 0
        for mb in range(c.bm):
            nb = 0
            while nb < bn:
                blk = c.nblocks[nb]
                base = tmp + (k % sets) * 16
                k += 1
                if c.epi == 'f32':
                    assert blk[0] == 'plain'
                    a = acc(nb, mb)
                    for r in range(4):
                        E(f"v_accvgpr_read_b32 v{base + r}, a{a + r}")
                    so = soff(mb * 16 * c.ldc + blk[1] * 4)
                    E(f"buffer_store_dwordx4 v[{base}:{base + 3}], v{vStP}, {srdC}, {so} offen")
                    nb += 1
                elif blk[0] == 'pair':
                    assert blk[2] == 0 and c.nblocks[nb + 1][0] == 'pair' and c.nblocks[nb + 1][2] == 1
                    a0, a1 = acc(nb, mb), acc(nb + 1, mb)
                    for r in range(4):
                        E(f"v_accvgpr_read_b32 v{base + r}, a{a0 + r}")
                        E(f"v_accvgpr_read_b32 v{base + 4 + r}, a{a1 + r}")
                    for d in range(4):
                        E(f"v_cvt_pk_bf16_f32 v{base + 8 + d}, v{base + 2 * d}, v{base + 2 * d + 1}")
                    so = soff(mb * 16 * c.ldc + blk[1] * 2)
                    E(f"buffer_store_dwordx4 v[{base + 8}:{base + 11}], v{vStP}, {srdC}, {so} offen")
                    nb += 2
                else:
                    a = acc(nb, mb)
                    for r in range(4):
                        E(f"v_accvgpr_read_b32 v{base + r}, a{a + r}")
                    for d in range(2):
                        E(f"v_cvt_pk_bf16_f32 v{base + 8 + d}, v{base + 2 * d}, v{base + 2 * d + 1}")
                    so = soff(mb * 16 * c.ldc + blk[1] * 2)
                    E(f"buffer_store_dwordx2 v[{base + 8}:{base + 9}], v{vStQ}, {srdC}, {so} offen")
                    nb += 1
    elif c.epi == 'glu8':
        groups = []
        nb = 0
        while nb < bn:
            np_ = 2 if c.nblocks[nb][0] == 'pair' else 1
            groups.append((nb, np_))
            nb += np_
        E(f"s_mov_b32 s{S_T1}, 0xbfb8aa3b")
        E(f"s_mov_b32 s{S_T2}, 0xffff0000")
        E("s_barrier")
        ng = len(groups)
        own = {0: list(range(0, ng // 2)), 1: list(range(ng // 2, ng))}

        def role_code(role):
            k = 0
            for mb in range(c.bm):
                for gi in own[1 - role]:
                    nb, np_ = groups[gi]
                    base = tmp + (k % 4) * 16
                    k += 1
                    for j in range(np_):
                        a_ = acc(nb + j, mb)
                        for r in range(4):
                            E(f"v_accvgpr_read_b32 v{base + 4 * j + r}, a{a_ + r}")
                    for d in range(2 * np_):
                        E(f"v_cvt_pk_bf16_f32 v{base + 8 + d}, v{base + 2 * d}, v{base + 2 * d + 1}")
                    slot = (mb * ng + gi) * 1024
                    if np_ == 2:
                        E(f"ds_write_b128 v{vXch}, v[{base + 8}:{base + 11}] offset:{slot}")
                    else:
                        E(f"ds_write_b64 v{vXch}, v[{base + 8}:{base + 9}] offset:{slot}")
            E("s_waitcnt lgkmcnt(0)")
            E("s_barrier")
            k = 0
            for mb in range(c.bm):
                for gi in own[role]:
                    nb, np_ = groups[gi]
                    blk = c.nblocks[nb]
                    nel = 4 * np_
                    base = tmp + (k % 2) * 40
                    k += 1
                    g, u, t, p, o = base, base + 8, base + 16, base + 24, base + 32
                    slot = (mb * ng + gi) * 1024
                    if np_ == 2:
                        E(f"ds_read_b128 v[{p}:{p + 3}], v{vXch} offset:{slot}")
                    else:
                        E(f"ds_read_b64 v[{p}:{p + 1}], v{vXch} offset:{slot}")
                    mine = g if role == 0 else u
                    other = u if role == 0 else g
                    for j in range(np_):
                        a_ = acc(nb + j, mb)
                        for r in range(4):
                            E(f"v_accvgpr_read_b32 v{mine + 4 * j + r}, a{a_ + r}")
                    for d in range(nel // 2):
                        E(f"v_cvt_pk_bf16_f32 v{o + d}, v{mine + 2 * d}, v{mine + 2 * d + 1}")
                    for d in range(nel // 2):
                        E(f"v_lshlrev_b32 v{mine + 2 * d}, 16, v{o + d}")
                        E(f"v_and_b32 v{mine + 2 * d + 1}, s{S_T2}, v{o + d}")
                    E("s_waitcnt lgkmcnt(0)")
                    for d in range(nel // 2):
                        E(f"v_lshlrev_b32 v{other + 2 * d}, 16, v{p + d}")
                        E(f"v_and_b32 v{other + 2 * d + 1}, s{S_T2}, v{p + d}")
                    for e in range(nel):
                        E(f"v_mul_f32 v{t + e}, s{S_T1}, v{g + e}")
                    for e in range(nel):
                        E(f"v_exp_f32 v{t + e}, v{t + e}")
                    for e in range(nel):
                        E(f"v_add_f32 v{t + e}, 1.0, v{t + e}")
                    for e in range(nel):
                        E(f"v_rcp_f32 v{t + e}, v{t + e}")
                    E("s_nop 0")
                    for d in range(nel // 2):
                        E(f"v_cvt_pk_bf16_f32 v{p + d}, v{t + 2 * d}, v{t + 2 * d + 1}")
                    for d in range(nel // 2):
                        E(f"v_lshlrev_b32 v{t + 2 * d}, 16, v{p + d}")
                        E(f"v_and_b32 v{t + 2 * d + 1}, s{S_T2}, v{p + d}")
                    for e in range(nel):
                        E(f"v_mul_f32 v{t + e}, v{t + e}, v{u + e}")
                    for d in range(nel // 2):
                        E(f"v_cvt_pk_bf16_f32 v{o + d}, v{t + 2 * d}, v{t + 2 * d + 1}")
                    so = soff(mb * 16 * c.ldc + blk[1] * 2)
                    if np_ == 2:
                        E(f"buffer_store_dwordx4 v[{o}:{o + 3}], v{vStP}, {srdC}, {so} offen")
                    else:
                        E(f"buffer_store_dwordx2 v[{o}:{o + 1}], v{vStQ}, {srdC}, {so} offen")

        E(f"s_cmp_lt_u32 s{S_WAVE}, {c.wm}")
        E(f"s_cbranch_scc1 {name}_gate")
        role_code(1)
        E(f"s_branch {name}_end")
        E.label(f"{name}_gate")
        role_code(0)
    else:
        hb = bn // 2
        E(f"s_mov_b32 s{S_T1}, 0xbfb8aa3b")
        E(f"s_mov_b32 s{S_T2}, 0xffff0000")
        k = 0
        for mb in range(c.bm):
            nb = 0
            while nb < hb:
                blk = c.nblocks[nb]
                npair = 2 if blk[0] == 'pair' else 1
                nel = 4 * npair
                base = tmp + (k % 2) * 40
                k += 1
                g = base
                u = base + 8
                t = base + 16
                p = base + 24
                o = base + 32
                for j in range(npair):
                    ag, au = acc(nb + j, mb), acc(hb + nb + j, mb)
                    for r in range(4):
                        E(f"v_accvgpr_read_b32 v{g + 4 * j + r}, a{ag + r}")
                        E(f"v_accvgpr_read_b32 v{u + 4 * j + r}, a{au + r}")
                for d in range(nel // 2):
                    E(f"v_cvt_pk_bf16_f32 v{p + d}, v{g + 2 * d}, v{g + 2 * d + 1}")
                for d in range(nel // 2):
                    E(f"v_lshlrev_b32 v{g + 2 * d}, 16, v{p + d}")
                    E(f"v_and_b32 v{g + 2 * d + 1}, s{S_T2}, v{p + d}")
                for d in range(nel // 2):
                    E(f"v_cvt_pk_bf16_f32 v{p + d}, v{u + 2 * d}, v{u + 2 * d + 1}")
                for e in range(nel):
                    E(f"v_mul_f32 v{t + e}, s{S_T1}, v{g + e}")
                for d in range(nel // 2):
                    E(f"v_lshlrev_b32 v{u + 2 * d}, 16, v{p + d}")
                    E(f"v_and_b32 v{u + 2 * d + 1}, s{S_T2}, v{p + d}")
                for e in range(nel):
                    E(f"v_exp_f32 v{t + e}, v{t + e}")
                for e in range(nel):
                    E(f"v_add_f32 v{t + e}, 1.0, v{t + e}")
                for e in range(nel):
                    E(f"v_rcp_f32 v{t + e}, v{t + e}")
                E("s_nop 0")
                for d in range(nel // 2):
                    E(f"v_cvt_pk_bf16_f32 v{p + d}, v{t + 2 * d}, v{t + 2 * d + 1}")
                for d in range(nel // 2):
                    E(f"v_lshlrev_b32 v{t + 2 * d}, 16, v{p + d}")
                    E(f"v_and_b32 v{t + 2 * d + 1}, s{S_T2}, v{p + d}")
                for e in range(nel):
                    E(f"v_mul_f32 v{t + e}, v{t + e}, v{u + e}")
                for d in range(nel // 2):
                    E(f"v_cvt_pk_bf16_f32 v{o + d}, v{t + 2 * d}, v{t + 2 * d + 1}")
                so = soff(mb * 16 * c.ldc + blk[1] * 2)
                if npair == 2:
                    E(f"buffer_store_dwordx4 v[{o}:{o + 3}], v{vStP}, {srdC}, {so} offen")
                else:
                    E(f"buffer_store_dwordx2 v[{o}:{o + 1}], v{vStQ}, {srdC}, {so} offen")
                nb += npair
    if stamp_on:
        E("s_waitcnt vmcnt(0)")
        stamp()
        E(f"s_load_dwordx2 s[56:57], s[0:1], {KARG['dbg']}")
        E("s_waitcnt lgkmcnt(0)")
        E("s_mov_b32 s60, s56")
        E("s_mov_b32 s61, s57")
        E("s_mov_b32 s62, 256")
        E("s_mov_b32 s63, 0x20000")
        E(f"s_cmp_lg_u32 s{S_WAVE}, 0")
        E(f"s_cbranch_scc1 {name}_end")
        E("s_cmp_eq_u32 s2, 133")
        E("s_cselect_b32 s58, 32, 0")
        E("s_cmp_eq_u32 s2, 0")
        E("s_cselect_b32 s59, 1, 0")
        E("s_cmp_eq_u32 s2, 133")
        E("s_cselect_b32 s59, 1, s59")
        E("s_cmp_eq_u32 s59, 0")
        E(f"s_cbranch_scc1 {name}_end")
        E("v_mov_b32 v1, s58")
        for i in range(4):
            E(f"v_mov_b32 v{2 + i}, s{64 + 2 * i}")
        E("s_nop 4")
        E("buffer_store_dwordx4 v[2:5], v1, s[60:63], 0 offen")
        E("s_waitcnt vmcnt(0)")
    E.label(f"{name}_end")
    nv = accum_offset + nacc
    assert accum_offset <= 256 and nv <= 512, (accum_offset, nv)
    kernel_footer(E, name, nv, 80 if stamp_on else 48, accum_offset)
    return E.text(), lds_bytes, (nw + nl) * 64
```

```python
import sys
import os
sys.path.insert(0, os.path.dirname(os.path.abspath(__file__)))
from asmlib import *
from gemm import *
from misc import gen_ln, gen_transpose

OUT = os.environ.get("GEN_OUT", "interleave_layers__spectral_fnet__glu_gated_glu__prompt.s")

HEADER = """; Kernarg layout for this problem (96 bytes, ptrs only, base s[0:1]):
"""


def common_tile_prologue(E, loads):
    for pair, key in loads:
        E(f"s_load_dwordx2 s[{pair}:{pair + 1}], s[0:1], {KARG[key]}")
    E(f"s_and_b32 s{S_T2}, s2, 7")
    E(f"s_lshr_b32 s{S_T3}, s2, 3")
    E("s_waitcnt lgkmcnt(0)")


ABT_PITCH = int(os.environ.get('ABT_PITCH', '4096'))


def setup_a1(E):
    common_tile_prologue(E, [(S_P0, 'hid_re'), (S_P1, 'hid_im'), (S_WSP, 'ws')])
    E(f"s_lshr_b32 s{S_T0}, s{S_T2}, 1")
    E(f"s_lshl_b32 s{S_T0}, s{S_T0}, 2")
    E(f"s_and_b32 s{S_T1}, s{S_T3}, 3")
    E(f"s_add_u32 s{S_TM}, s{S_T0}, s{S_T1}")
    E(f"s_and_b32 s{S_T0}, s{S_T2}, 1")
    E(f"s_lshl_b32 s{S_T0}, s{S_T0}, 3")
    E(f"s_lshr_b32 s{S_T1}, s{S_T3}, 2")
    E(f"s_add_u32 s{S_TN}, s{S_T0}, s{S_T1}")
    E(f"s_cmp_lt_u32 s{S_TM}, 8")
    E(f"s_cselect_b64 s[{S_P2}:{S_P2 + 1}], s[{S_P0}:{S_P0 + 1}], s[{S_P1}:{S_P1 + 1}]")
    E(f"s_and_b32 s{S_T0}, s{S_TM}, 7")
    E(f"s_mul_i32 s{S_T0}, s{S_T0}, {128 * 2048}")
    build_srd(E, S_SRD_M, S_P2, f"s{S_T0}", 1024 * 1024 * 2)
    ws_ptr(E, S_XP0, WS['LN'])
    E(f"s_mul_i32 s{S_T0}, s{S_TN}, {128 * 2048}")
    build_srd(E, S_SRD_N, S_XP0, f"s{S_T0}", 2048 * 1024 * 2)
    ws_ptr(E, S_XP0, WS['ABT'])
    E(f"s_mul_i32 s{S_T0}, s{S_TM}, {128 * ABT_PITCH}")
    E(f"s_mul_i32 s{S_T1}, s{S_TN}, {128 * 2}")
    E(f"s_add_u32 s{S_T0}, s{S_T0}, s{S_T1}")
    build_srd(E, S_SRD_C, S_XP0, f"s{S_T0}", 2048 * ABT_PITCH)


def tile_z_16x8(E):
    E(f"s_and_b32 s{S_Z}, s{S_T2}, 1")
    E(f"s_lshr_b32 s{S_T0}, s{S_T2}, 1")
    E(f"s_lshl_b32 s{S_T0}, s{S_T0}, 2")
    E(f"s_and_b32 s{S_T1}, s{S_T3}, 3")
    E(f"s_add_u32 s{S_TM}, s{S_T0}, s{S_T1}")
    E(f"s_lshr_b32 s{S_TN}, s{S_T3}, 2")


def setup_a2(E):
    common_tile_prologue(E, [(S_P0, 'seq_re'), (S_P1, 'seq_im'), (S_WSP, 'ws')])
    tile_z_16x8(E)
    E(f"s_cmp_eq_u32 s{S_Z}, 0")
    E(f"s_cselect_b64 s[{S_P2}:{S_P2 + 1}], s[{S_P0}:{S_P0 + 1}], s[{S_P1}:{S_P1 + 1}]")
    E(f"s_mul_i32 s{S_T0}, s{S_TM}, {128 * 4096}")
    build_srd(E, S_SRD_M, S_P2, f"s{S_T0}", 2048 * 2048 * 2)
    ws_ptr(E, S_XP0, WS['ABT'])
    E(f"s_lshl_b32 s{S_T0}, s{S_Z}, 3")
    E(f"s_add_u32 s{S_T0}, s{S_T0}, s{S_TN}")
    E(f"s_mul_i32 s{S_T0}, s{S_T0}, {128 * ABT_PITCH}")
    build_srd(E, S_SRD_N, S_XP0, f"s{S_T0}", 2048 * ABT_PITCH)
    ws_ptr(E, S_XP0, WS['P'])
    E(f"s_mul_i32 s{S_T0}, s{S_Z}, {2048 * 2048}")
    E(f"s_mul_i32 s{S_T1}, s{S_TM}, {128 * 2048}")
    E(f"s_add_u32 s{S_T0}, s{S_T0}, s{S_T1}")
    E(f"s_mul_i32 s{S_T1}, s{S_TN}, {128 * 2}")
    E(f"s_add_u32 s{S_T0}, s{S_T0}, s{S_T1}")
    build_srd(E, S_SRD_C, S_XP0, f"s{S_T0}", 2 * 2048 * 1024 * 2)


def setup_b1(E):
    common_tile_prologue(E, [(S_WSP, 'ws'), (S_P0, 'w_gate'), (S_P1, 'w_up')])
    E(f"s_and_b32 s{S_T0}, s{S_T2}, 1")
    E(f"s_lshl_b32 s{S_T0}, s{S_T0}, 2")
    E(f"s_and_b32 s{S_T1}, s{S_T3}, 3")
    E(f"s_add_u32 s{S_TM}, s{S_T0}, s{S_T1}")
    E(f"s_lshr_b32 s{S_T0}, s{S_T2}, 1")
    E(f"s_lshl_b32 s{S_T0}, s{S_T0}, 3")
    E(f"s_lshr_b32 s{S_T1}, s{S_T3}, 2")
    E(f"s_add_u32 s{S_TN}, s{S_T0}, s{S_T1}")
    ws_ptr(E, S_XP0, WS['LN'])
    E(f"s_mul_i32 s{S_T0}, s{S_TM}, {256 * 2048}")
    build_srd(E, S_SRD_M, S_XP0, f"s{S_T0}", 2048 * 1024 * 2)
    E(f"s_mul_i32 s{S_T0}, s{S_TN}, {112 * 2}")
    build_srd(E, S_SRD_N, S_P0, f"s{S_T0}", 1024 * 7168)
    build_srd(E, S_SRD_N2, S_P1, f"s{S_T0}", 1024 * 7168)
    ws_ptr(E, S_XP0, WS['H'])
    E(f"s_mul_i32 s{S_T0}, s{S_TM}, {256 * 7168}")
    E(f"s_mul_i32 s{S_T1}, s{S_TN}, {112 * 2}")
    E(f"s_add_u32 s{S_T0}, s{S_T0}, s{S_T1}")
    build_srd(E, S_SRD_C, S_XP0, f"s{S_T0}", 2048 * 7168)


def setup_b2(E):
    common_tile_prologue(E, [(S_WSP, 'ws'), (S_P0, 'w_down')])
    tile_z_16x8(E)
    ws_ptr(E, S_XP0, WS['H'])
    E(f"s_mul_i32 s{S_T0}, s{S_TM}, {128 * 7168}")
    E(f"s_mul_i32 s{S_T1}, s{S_Z}, {1792 * 2}")
    E(f"s_add_u32 s{S_T0}, s{S_T0}, s{S_T1}")
    build_srd(E, S_SRD_M, S_XP0, f"s{S_T0}", 2048 * 7168)
    E(f"s_mul_i32 s{S_T0}, s{S_Z}, {1792 * 2048}")
    E(f"s_mul_i32 s{S_T1}, s{S_TN}, {128 * 2}")
    E(f"s_add_u32 s{S_T0}, s{S_T0}, s{S_T1}")
    build_srd(E, S_SRD_N, S_P0, f"s{S_T0}", 3584 * 2048)
    ws_ptr(E, S_XP0, WS['Q'])
    E(f"s_mul_i32 s{S_T0}, s{S_Z}, {2048 * 1024 * 4}")
    E(f"s_mul_i32 s{S_T1}, s{S_TM}, {128 * 4096}")
    E(f"s_add_u32 s{S_T0}, s{S_T0}, s{S_T1}")
    E(f"s_mul_i32 s{S_T1}, s{S_TN}, {128 * 4}")
    E(f"s_add_u32 s{S_T0}, s{S_T0}, s{S_T1}")
    build_srd(E, S_SRD_C, S_XP0, f"s{S_T0}", 2 * 2048 * 1024 * 4)


PAIR64 = [('pair', 0, 0), ('pair', 0, 1), ('pair', 32, 0), ('pair', 32, 1)]
PLAIN64 = [('plain', 0), ('plain', 16), ('plain', 32), ('plain', 48)]
GLU224 = []
for base in (0, 112):
    for q in range(3):
        GLU224 += [('pair', base + 32 * q, 0), ('pair', base + 32 * q, 1)]
    GLU224 += [('plain', base + 96)]
GLU224T = []
for reg in (0, 1):
    for q in range(3):
        GLU224T += [('pair', 32 * q, 0, reg), ('pair', 32 * q, 1, reg)]
    GLU224T += [('plain', 96, reg)]
PLAIN64T = [('plain', 0, 0), ('plain', 16, 0), ('plain', 32, 0), ('plain', 48, 0)]

S128 = int(os.environ.get("S128", "4"))
NLOAD = int(os.environ.get("NLOAD", "4"))

CFGS = {
    'gemm_a1_kernel': GemmCfg(wm=2, wn=2, bm=4, nblocks=PAIR64, tn_rows=64, K=1024, S=S128, nwg=256,
                              pitchM=2048, pitchN=2048, ldc=ABT_PITCH, epi='bf16', setup=setup_a1, loaders=NLOAD),
    'gemm_a2_kernel': GemmCfg(wm=2, wn=2, bm=4, nblocks=PAIR64, tn_rows=64, K=2048, S=S128, nwg=256,
                              pitchM=4096, pitchN=ABT_PITCH, ldc=2048, epi='bf16', setup=setup_a2, loaders=NLOAD),
    'gemm_b1_kernel': GemmCfg(wm=4, wn=2, bm=4, nblocks=GLU224T[:7], tn_rows=112, ncol_wave=112, K=1024, S=2, nwg=256,
                              pitchM=2048, pitchN=7168, ldc=7168, epi='glu8', setup=setup_b1, ntr=True, nregions=2,
                              wn_is_region=True),
    'gemm_b2_kernel': GemmCfg(wm=2, wn=2, bm=4, nblocks=PLAIN64T, tn_rows=64, K=1792, S=S128, nwg=256,
                              pitchM=7168, pitchN=2048, ldc=4096, epi='f32', setup=setup_b2, ntr=True, nregions=1, loaders=NLOAD),
}


def main():
    if os.environ.get('STAMP'):
        for c in CFGS.values():
            c.stamp = True
    body = []
    launches = []
    mods = {}
    for name, cfg in CFGS.items():
        txt, lds, threads = gen_gemm(name, cfg)
        body.append(txt)
        mods[name] = (256, threads, lds)
    body.append(gen_ln('ln_first_kernel', 'first', 'in'))
    body.append(gen_ln('ln_a_in_kernel', 'A', 'in'))
    body.append(gen_ln('ln_a_ws_kernel', 'A', 'ws'))
    body.append(gen_ln('ln_b_kernel', 'B', 'ws'))
    body.append(gen_ln('ln_final_kernel', 'final', 'ws'))
    for n in ('ln_first_kernel', 'ln_a_in_kernel', 'ln_a_ws_kernel', 'ln_b_kernel', 'ln_final_kernel'):
        mods[n] = (512, 256, 0)

    order = ['ln_first_kernel', 'gemm_a1_kernel', 'gemm_a2_kernel', 'ln_a_in_kernel',
             'gemm_b1_kernel', 'gemm_b2_kernel', 'ln_b_kernel', 'gemm_a1_kernel', 'gemm_a2_kernel',
             'ln_a_ws_kernel', 'gemm_b1_kernel', 'gemm_b2_kernel', 'ln_final_kernel']
    hdr = HEADER
    for k in order:
        g, t, l = mods[k]
        hdr += f"; @launch kernel={k} grid=({g},1,1) block=({t},1,1) lds={l}\n"
    out = hdr + '.amdgcn_target "amdgcn-amd-amdhsa--gfx950"\n' + "\n".join(body)
    with open(OUT, "w") as f:
        f.write(out)
    print("wrote", OUT, len(out), "bytes")


if __name__ == "__main__":
    main()
```
